```python
import torch

def _softmax(x, axis=-1):
    return torch.softmax(x, dim=axis)
def _gelu(x):
    return torch.nn.functional.gelu(x, approximate="tanh")
def _silu(x):
    return torch.nn.functional.silu(x)
def _sigmoid(x):
    return torch.sigmoid(x)
def _layernorm(x, axis=-1, eps=1e-5):
    m = x.mean(dim=axis, keepdim=True)
    v = x.var(dim=axis, keepdim=True, unbiased=False)
    return (x - m) / torch.sqrt(v + eps)
def _scatter_add(tgt, idx, src, axis=0):
    return tgt.clone().index_add_(axis, idx, src)
def _segment_sum(src, seg, n):
    out = torch.zeros((n,) + src.shape[1:], dtype=src.dtype)
    return out.index_add_(0, seg, src)
def _pad(x, pw):
    flat = tuple(v for pair in reversed(pw) for v in pair)
    return torch.nn.functional.pad(x, flat)

kernel_name = 'parallel_sum__grouped_kv_mqa__glu_gated_reglu__prompt'

def setup_inputs():

    _w = (lambda a: (lambda t: t.to(torch.bfloat16) if t.is_floating_point() else t)(torch.as_tensor(a)))
    def _A_setup():
        B, S, D, H = 1, 2048, 640, 32
        Dh = D // H
        return {
            "x": _w((lambda *s: torch.randn(*s, dtype=torch.bfloat16) * 0.05)(B, S, D)),
            "wq": _w((lambda *s: torch.randn(*s, dtype=torch.bfloat16) * 0.05)(D, H * Dh)),
            "wk": _w((lambda *s: torch.randn(*s, dtype=torch.bfloat16) * 0.05)(D, Dh)),
            "wv": _w((lambda *s: torch.randn(*s, dtype=torch.bfloat16) * 0.05)(D, Dh)),
            "wo": _w((lambda *s: torch.randn(*s, dtype=torch.bfloat16) * 0.05)(H * Dh, D)),
        }
    _A_in = _A_setup()

    def _B_setup():
        B, S, D, F = 1, 2048, 640, 1728
        return {
            "x": _w((lambda *s: torch.randn(*s, dtype=torch.bfloat16) * 0.05)(B, S, D)),
            "W_gate": _w((lambda *s: torch.randn(*s, dtype=torch.bfloat16) * 0.8)(D, F) * (2.0 / D) ** 0.5),
            "W_up": _w((lambda *s: torch.randn(*s, dtype=torch.bfloat16) * 0.8)(D, F) * (2.0 / D) ** 0.5),
            "W_down": _w((lambda *s: torch.randn(*s, dtype=torch.bfloat16) * 0.8)(F, D) * (1.0 / F) ** 0.5),
        }
    _B_in = _B_setup()

    return {
        "A_x": _A_in["x"],
        "A_wq": _A_in["wq"],
        "A_wk": _A_in["wk"],
        "A_wv": _A_in["wv"],
        "A_wo": _A_in["wo"],
        "B_x": _B_in["x"],
        "B_W_gate": _B_in["W_gate"],
        "B_W_up": _B_in["W_up"],
        "B_W_down": _B_in["W_down"],
    }

def reference(A_x, A_wq, A_wk, A_wv, A_wo, B_x, B_W_gate, B_W_up, B_W_down):
    def _A_ref(x, wq, wk, wv, wo):
        B, S, D = x.shape
        H = 32
        Dh = D // H
        q = (lambda x, *d: x.permute(*d))((x @ wq).reshape(B, S, H, Dh), 0, 2, 1, 3)
        k = x @ wk
        v = x @ wv
        scores = torch.einsum("bhqd,bkd->bhqk", q, k) * (Dh ** -0.5)
        p = _softmax(scores, axis=-1)
        o = torch.einsum("bhqk,bkd->bhqd", p, v)
        return (lambda x, *d: x.permute(*d))(o, 0, 2, 1, 3).reshape(B, S, H * Dh) @ wo

    def _B_ref(x, W_gate, W_up, W_down):
        gate = torch.einsum("bsd,df->bsf", x, W_gate)
        up = torch.einsum("bsd,df->bsf", x, W_up)
        gate = gate * (lambda x, dt: x.to(dt))(gate > 0, gate.dtype)
        h = gate * up
        return torch.einsum("bsf,fd->bsd", h, W_down)

    x = A_x
    xn = _layernorm(x, axis=-1)
    return x + _A_ref(xn, A_wq, A_wk, A_wv, A_wo) + _B_ref(xn, B_W_gate, B_W_up, B_W_down)
```

```python
class K:
    def __init__(self, name):
        self.name = name
        self.lines = []
        self.vmax = 0
        self.lab = 0
    def e(self, s):
        for ln in s.split("\n"):
            ln = ln.strip()
            if ln:
                self.lines.append("    " + ln if not ln.endswith(":") else ln)
    def c(self, s):
        self.lines.append("    ; " + s)
    def label(self, base):
        self.lab += 1
        return f"L_{self.name}_{base}_{self.lab}"
    def text(self):
        return "\n".join(self.lines)

def v(a, n=1):
    return f"v{a}" if n == 1 else f"v[{a}:{a+n-1}]"
def s(a, n=1):
    return f"s{a}" if n == 1 else f"s[{a}:{a+n-1}]"

def srd(k, d, base, nbytes, off=0):
    if off:
        k.e(f"s_add_u32 s{d}, s{base}, {hex(off)}")
        k.e(f"s_addc_u32 s{d+1}, s{base+1}, 0")
    else:
        k.e(f"s_mov_b32 s{d}, s{base}")
        k.e(f"s_mov_b32 s{d+1}, s{base+1}")
    k.e(f"s_mov_b32 s{d+2}, {hex(nbytes)}")
    k.e(f"s_mov_b32 s{d+3}, 0x20000")

def finish(k, vgpr, sgpr=96, accum=None):
    if accum is None:
        accum = (min(vgpr, 256) + 3) // 4 * 4
    n = k.name
    return f""".text
.globl {n}
.p2align 8
.type {n},@function
{n}:
{k.text()}
    s_endpgm
.section .rodata,"a"
.p2align 6
.amdhsa_kernel {n}
  .amdhsa_next_free_vgpr {vgpr}
  .amdhsa_next_free_sgpr {sgpr}
  .amdhsa_accum_offset {accum}
  .amdhsa_group_segment_fixed_size 0
  .amdhsa_kernarg_size 96
  .amdhsa_user_sgpr_count 2
  .amdhsa_user_sgpr_kernarg_segment_ptr 1
  .amdhsa_system_sgpr_workgroup_id_x 1
.end_amdhsa_kernel
"""

def merge(main, fill, start=0, every=1):
    out = []
    fi = 0
    for i, m in enumerate(main):
        out.append(m)
        if i >= start and (i - start) % every == 0 and fi < len(fill):
            out.append(fill[fi]); fi += 1
    out += fill[fi:]
    return out

A_X, A_WQ, A_WK, A_WV, A_WO, A_BX, A_WG, A_WU, A_WD, A_OUT, A_DBG, A_WS = [8*i for i in range(12)]
S, D, F, H, DH = 2048, 640, 1728, 32, 20
WS_XN = 0x0
WS_Q  = 0x280000
WS_KV = 0x500000
WS_KN = 0x540000
WS_HO = 0x600000
KV_STRIDE = 3584
HO_BLK = 148
WS_SIZE = 0x10000000

import re
def regs_of(tok):
    m = re.fullmatch(r"v\[(\d+):(\d+)\]", tok)
    if m: return set(range(int(m.group(1)), int(m.group(2))+1))
    m = re.fullmatch(r"v(\d+)", tok)
    if m: return {int(m.group(1))}
    return set()

class Q:
    def __init__(self, name, maxn, init=None):
        self.name, self.maxn = name, maxn
        self.q = list(init or [])
    def issue(self, item):
        self.q.append(item)
    def need(self, pred):
        last = -1
        for i, it in enumerate(self.q):
            if pred(it): last = i
        if last < 0: return None
        n = len(self.q) - 1 - last
        n = min(n, self.maxn)
        self.q = self.q[len(self.q)-n:] if n else []
        return f"s_waitcnt {self.name}({n})"
    def drain(self):
        self.q = []
        return f"s_waitcnt {self.name}(0)"

def operands(ins):
    parts = ins.split(None, 1)
    if len(parts) < 2: return []
    return [t.strip() for t in re.split(r",\s*(?![^\[]*\])", parts[1].split(" offset")[0])]

def autowait(k, stream, lq, vq=None):
    for ins in stream:
        op = ins.split()[0]
        ops = operands(ins)
        allregs = set()
        for t in ops:
            allregs |= regs_of(t.split()[0])
        for q in (lq, vq):
            if q is None: continue
            w = q.need(lambda it: isinstance(it, frozenset) and (it & allregs))
            if w: k.e(w)
        if op == "LGKM0":
            k.e(lq.drain()); continue
        k.e(ins)
        if op.startswith("ds_read"):
            lq.issue(frozenset(regs_of(ops[0])))
        elif op.startswith("ds_write"):
            lq.issue("w")
        elif vq is not None and (op.startswith("global_load") or op.startswith("buffer_load")):
            vq.issue("dma" if " lds" in ins or "_lds_" in op else frozenset(regs_of(ops[0])))
        elif vq is not None and (op.startswith("global_store") or op.startswith("buffer_store")):
            vq.issue("st")
```

```python
from dsl import *
import struct
AT_WGS = 256
AT_LDS = 32768
def f2u(x): return struct.unpack("<I", struct.pack("<f", x))[0]

QB, OB, SB, KVB = 16, 64, 128, 192
def Q1(c): return f"v[{QB+6*c}:{QB+6*c+3}]"
def Q2(c): return f"v[{QB+6*c+4}:{QB+6*c+5}]"
def O(c): return f"v[{OB+16*c}:{OB+16*c+15}]"
def Sx(c): return f"v[{SB+16*c}:{SB+16*c+15}]"
def K1(b): return f"v[{KVB+14*b}:{KVB+14*b+3}]"
def V0(b): return f"v[{KVB+14*b+4}:{KVB+14*b+7}]"
def V1(b): return f"v[{KVB+14*b+8}:{KVB+14*b+11}]"
def K2(b): return f"v[{KVB+14*b+12}:{KVB+14*b+13}]"
def qk1(b, c): return f"v_mfma_f32_32x32x16_bf16 {Sx(c)}, {K1(b)}, {Q1(c)}, 0"
def qk2(b, c): return f"v_mfma_f32_32x32x8_bf16 {Sx(c)}, {K2(b)}, {Q2(c)}, {Sx(c)}"
def pva(b, c): return f"v_smfmac_f32_32x32x32_bf16 {O(c)}, {V0(b)}, v[{SB+16*c}:{SB+16*c+7}], v2"
def pvb(b, c): return f"v_smfmac_f32_32x32x32_bf16 {O(c)}, {V1(b)}, v[{SB+16*c+8}:{SB+16*c+15}], v2"
def kvloads(b, so="s40"):
    return [f"buffer_load_dwordx4 {K1(b)}, v3, s[24:27], {so} offen",
            f"buffer_load_dwordx2 {K2(b)}, v4, s[24:27], {so} offen offset:3072",
            f"buffer_load_dwordx4 {V0(b)}, v3, s[24:27], {so} offen offset:1024",
            f"buffer_load_dwordx4 {V1(b)}, v3, s[24:27], {so} offen offset:2048"]
ADV = [f"s_add_u32 s40, s40, {KV_STRIDE}", "s_cmp_eq_u32 s40, s42", "s_cselect_b32 s40, s41, s40"]

def half_swap(k, reg, tmp, op):
    k.e(f"v_mov_b32 v{tmp}, v{reg}")
    k.e("s_nop 1")
    k.e(f"v_permlane32_swap_b32 v{reg}, v{tmp}")
    k.e("s_nop 1")
    k.e(f"{op} v{reg}, v{reg}, v{tmp}")

def att_body(k, wgreg="s2"):
    k.e(f"s_load_dwordx2 s[6:7], s[0:1], {A_WS}")
    k.e("v_lshrrev_b32 v5, 6, v0")
    k.e("v_and_b32 v1, 63, v0")
    k.e("v_readfirstlane_b32 s28, v5")
    k.e("v_lshlrev_b32 v3, 4, v1")
    k.e("v_lshlrev_b32 v4, 3, v1")
    k.e("v_mov_b32 v2, 0xdddddddd")
    k.e("v_lshrrev_b32 v5, 5, v1")
    k.e("v_and_b32 v6, 31, v1")
    k.e("v_lshlrev_b32 v6, 4, v6")
    k.e("s_and_b32 s29, s28, 1")
    k.e("s_lshr_b32 s30, s28, 1")
    k.e(f"s_lshr_b32 s31, {wgreg}, 3")
    k.e("s_lshl_b32 s31, s31, 1")
    k.e("s_add_u32 s31, s31, s29")
    k.e(f"s_and_b32 s32, {wgreg}, 7")
    for c in range(4):
        k.e("s_lshl_b32 s33, s30, 1")
        k.e(f"s_add_u32 s33, s33, {c}")
        k.e("s_and_b32 s33, s33, 3")
        k.e("s_lshl_b32 s34, s32, 2")
        k.e("s_add_u32 s33, s33, s34")
        k.e("s_mul_i32 s33, s33, 5")
        for g in range(3):
            r = 40 + 3*c + g
            k.e(f"s_add_u32 s34, s33, {2*g}")
            k.e(f"v_add_u32 v7, s34, v5")
            k.e(f"v_lshrrev_b32 v8, 2, v7")
            k.e(f"v_lshl_add_u32 v{r}, v8, 10, v6")
            k.e(f"v_and_b32 v8, 1, v7")
            k.e(f"v_lshl_add_u32 v{r}, v8, 9, v{r}")
            k.e(f"v_and_b32 v8, 2, v7")
            k.e(f"v_lshl_add_u32 v{r}, v8, 2, v{r}")
    k.e(f"s_mul_i32 s35, s31, {40*1024}")
    k.e(f"s_add_u32 s35, s35, {WS_Q}")
    k.e(f"s_mul_i32 s41, s30, {32*KV_STRIDE}")
    k.e(f"s_add_u32 s41, s41, {WS_KV}")
    k.e(f"s_add_u32 s42, s41, {32*KV_STRIDE}")
    k.e(f"s_lshr_b32 s33, {wgreg}, 3")
    k.e("s_and_b32 s33, s33, 31")
    k.e(f"s_mul_i32 s33, s33, {KV_STRIDE}")
    k.e("s_add_u32 s40, s41, s33")
    k.e(f"s_mov_b32 s36, {WS_KN}")
    k.e("s_waitcnt lgkmcnt(0)")
    srd(k, 24, 6, 0x1000000)
    vq = Q("vmcnt", 63)
    lq = Q("lgkmcnt", 15)
    pro = [f"buffer_load_dwordx4 v[8:11], v3, s[24:27], s36 offen"]
    for c in range(4):
        for g in range(3):
            d = QB + 6*c + 2*g
            pro.append(f"buffer_load_dwordx2 v[{d}:{d+1}], v{40+3*c+g}, s[24:27], s35 offen")
    for b in range(3):
        pro += kvloads(b) + ADV
    autowait(k, pro, lq, vq)
    for i in range(64):
        k.e(f"v_mov_b32 v{OB+i}, 0")
    for i in range(8):
        k.e(f"v_mov_b32 v{SB+48+8+i}, 0")
    for i in range(4):
        k.e(f"v_mov_b32 v{KVB+14*3+8+i}, 0")
    autowait(k, ["v_add_f32 v8, v8, v9", "v_add_f32 v10, v10, v11", "v_max_f32 v8, v8, v10"], lq, vq)
    for r in (8, 4, 2, 1):
        k.e("s_nop 1")
        k.e(f"v_max_f32_dpp v8, v8, v8 row_ror:{r} row_mask:0xf bank_mask:0xf")
    k.e("v_mov_b32 v9, v8")
    k.e("s_nop 1")
    k.e("v_permlane16_swap_b32 v8, v9")
    k.e("s_nop 1")
    k.e("v_max_f32 v8, v8, v9")
    half_swap(k, 8, 9, "v_max_f32")
    k.e("v_cmp_eq_u32 vcc, 0, v5")
    st = []
    for c in range(4):
        b = QB + 6*c
        st += [f"v_cndmask_b32 v{b+4}, 0, v{b+4}, vcc", f"v_cndmask_b32 v{b+5}, 0, v{b+5}, vcc"]
        st += [f"v_dot2_f32_bf16 v{10+c}, v{b}, v{b}, 0"]
        st += [f"v_dot2_f32_bf16 v{10+c}, v{b+i}, v{b+i}, v{10+c}" for i in range(1, 6)]
    k.e("s_nop 1")
    autowait(k, st, lq, vq)
    k.e("s_nop 2")
    for c in range(4):
        half_swap(k, 10+c, 14, "v_add_f32")
    k.e("v_max3_f32 v10, v10, v11, v12")
    k.e("v_max_f32 v10, v10, v13")
    k.e("v_mul_f32 v10, v10, v8")
    k.e(f"v_mov_b32 v11, {hex(f2u(3600.0))}")
    k.e("v_cmp_nle_f32 vcc, v10, v11")
    k.e("s_nop 4")
    k.e("s_cbranch_vccz L_att_fast")
    k.e("s_waitcnt vmcnt(0)")
    for c in range(4):
        k.e(f"v_mov_b32 v{10+c}, 0xff800000")
    k.e(f"s_mov_b32 s44, {WS_KV}")
    k.e("s_mov_b32 s45, 64")
    k.e("L_att_fb:")
    k.e(f"buffer_load_dwordx4 v[52:55], v3, s[24:27], s44 offen")
    k.e(f"buffer_load_dwordx2 v[56:57], v4, s[24:27], s44 offen offset:3072")
    k.e("s_waitcnt vmcnt(0)")
    for c in range(3):
        pass
    for c in range(4):
        sc = c % 2
        k.e(f"v_mfma_f32_32x32x16_bf16 {Sx(sc)}, v[52:55], {Q1(c)}, 0")
        k.e(f"v_mfma_f32_32x32x8_bf16 {Sx(sc)}, v[56:57], {Q2(c)}, {Sx(sc)}")
        k.e("s_nop 15")
        for r in range(0, 16, 2):
            k.e(f"v_max3_f32 v{10+c}, v{SB+16*sc+r}, v{SB+16*sc+r+1}, v{10+c}")
    k.e(f"s_add_u32 s44, s44, {KV_STRIDE}")
    k.e("s_sub_u32 s45, s45, 1")
    k.e("s_cmp_lg_u32 s45, 0")
    k.e("s_cbranch_scc1 L_att_fb")
    k.e("v_cmp_eq_u32 vcc, 0, v5")
    for c in range(4):
        b = QB + 6*c
        half_swap(k, 10+c, 14, "v_max_f32")
        k.e(f"v_sub_f32 v14, 0, v{10+c}")
        k.e("v_and_b32 v15, 0xffff0000, v14")
        k.e("v_sub_f32 v14, v14, v15")
        k.e("v_and_b32 v52, 0xffff0000, v14")
        k.e("v_sub_f32 v14, v14, v52")
        k.e("v_lshrrev_b32 v14, 16, v14")
        k.e("v_lshrrev_b32 v15, 16, v15")
        k.e("v_or_b32 v15, v15, v52")
        k.e(f"v_cndmask_b32 v{b+4}, v15, v{b+4}, vcc")
        k.e(f"v_cndmask_b32 v{b+5}, v14, v{b+5}, vcc")
    k.e("s_nop 1")
    k.e("L_att_fast:")
    autowait(k, [qk1(0, 0), qk1(0, 1), qk2(0, 0), qk2(0, 1)], lq, vq)
    k.e("s_mov_b32 s43, 8")
    k.e("s_nop 7")
    def body():
        st = []
        for i in range(4):
            for c in range(4):
                e = [f"v_exp_f32 v{SB+16*c+r}, v{SB+16*c+r}" for r in range(16)]
                pb, pc = (i, c-1) if c > 0 else ((i+3) % 4, 3)
                nb, nc = (i, c+2) if c < 2 else ((i+1) % 4, c-2)
                ex = [[], [], [], []]
                if c == 1:
                    ld = kvloads((i+3) % 4)
                    ex = [[ld[0]], [ld[1]], [ld[2]], [ld[3]] + ADV]
                st += e[0:2] + [pvb(pb, pc)] + e[2:4] + ex[0] + e[4:6] + [qk1(nb, nc)] + e[6:8] + ex[1] + e[8:10]
                st += [pva(i, c)] + e[10:12] + ex[2] + e[12:14] + [qk2(nb, nc)] + e[14:16] + ex[3]
        return st
    tmp = K("tmp"); q2 = Q("vmcnt", 63, vq.q); autowait(tmp, body(), lq, q2)
    head = list(q2.q)
    if vq.q != head:
        assert vq.q[len(vq.q)-len(head):] == head, (vq.q, head)
        k.e(f"s_waitcnt vmcnt({len(head)})")
        vq.q = list(head)
    k.e(".p2align 6")
    k.e("L_att_loop:")
    autowait(k, body(), lq, vq)
    assert vq.q == head
    k.e("s_sub_u32 s43, s43, 1")
    k.e("s_cmp_lg_u32 s43, 0")
    k.e("s_cbranch_scc1 L_att_loop")
    k.e(pvb(3, 3))
    k.e("s_lshl_b32 s33, s28, 13")
    k.e("v_add_u32 v7, s33, v3")
    k.e("s_xor_b32 s33, s33, 0x4000")
    k.e("v_add_u32 v8, s33, v3")
    k.e(f"s_mul_i32 s35, s31, {HO_BLK*1024}")
    k.e(f"s_add_u32 s35, s35, {WS_HO + 108*1024}")
    k.e("s_nop 7")
    for t in range(2):
        b = OB + 16*(2+t)
        for p in range(3):
            k.e(f"ds_write_b128 v7, v[{b+4*p}:{b+4*p+3}] offset:{t*4096 + p*1024}")
        k.e(f"ds_write_b32 v7, v{b+12} offset:{t*4096 + 3072}")
    k.e("s_waitcnt lgkmcnt(0)")
    k.e("s_barrier")
    for t in range(2):
        b = SB + 16*t
        for p in range(3):
            k.e(f"ds_read_b128 v[{b+4*p}:{b+4*p+3}], v8 offset:{t*4096 + p*1024}")
        k.e(f"ds_read_b32 v{b+12}, v8 offset:{t*4096 + 3072}")
    k.e("s_waitcnt lgkmcnt(0)")
    for t in range(2):
        b, o = SB + 16*t, OB + 16*t
        for r in range(13):
            k.e(f"v_add_f32 v{o+r}, v{o+r}, v{b+r}")
        k.e(f"v_rcp_f32 v{o+12}, v{o+12}")
        k.e("s_nop 0")
        for r in range(12):
            k.e(f"v_mul_f32 v{o+r}, v{o+r}, v{o+12}")
        for r in range(6):
            k.e(f"v_cvt_pk_bf16_f32 v{b+r}, v{o+2*r}, v{o+2*r+1}")
        for g in range(2):
            k.e(f"buffer_store_dwordx2 v[{b+2*g}:{b+2*g+1}], v{40+3*t+g}, s[24:27], s35 offen")
    k.e("s_mov_b64 exec, 0xffffffff")
    for t in range(2):
        b = SB + 16*t
        k.e(f"buffer_store_dwordx2 v[{b+4}:{b+5}], v{40+3*t+2}, s[24:27], s35 offen")

def gen_att():
    k = K("att_kernel")
    k.e(f"s_cmp_ge_u32 s2, {AT_WGS}")
    k.e("s_cbranch_scc1 L_att_done")
    att_body(k)
    k.e("L_att_done:")
    return finish(k, 248), ("att_kernel", AT_WGS, 256, AT_LDS)
```

```python
from dsl import *
import struct
G1_WGS = 256
G1_SLOT = 49152
G1_LDS = 3*G1_SLOT
QSCALE = struct.unpack("<I", struct.pack("<f", (20 ** -0.5) * 1.4426950408889634))[0]

def gen_g1():
    k = K("g1_kernel")
    done = "L_g1_done"
    k.e(f"s_cmp_ge_u32 s2, {G1_WGS}")
    k.e(f"s_cbranch_scc1 {done}")
    k.e(f"s_load_dwordx2 s[4:5], s[0:1], {A_WQ}")
    k.e(f"s_load_dwordx4 s[8:11], s[0:1], {A_WG}")
    k.e(f"s_load_dwordx2 s[6:7], s[0:1], {A_WS}")
    k.e("v_lshrrev_b32 v3, 6, v0")
    k.e("v_and_b32 v1, 63, v0")
    k.e("v_readfirstlane_b32 s28, v3")
    k.e("s_and_b32 s31, s2, 7")
    k.e("s_lshr_b32 s32, s2, 3")
    k.e("s_and_b32 s29, s31, 1")
    k.e("s_lshl_b32 s29, s29, 2")
    k.e("s_and_b32 s33, s32, 3")
    k.e("s_add_u32 s29, s29, s33")
    k.e("s_lshr_b32 s30, s31, 1")
    k.e("s_lshl_b32 s30, s30, 3")
    k.e("s_lshr_b32 s33, s32, 2")
    k.e("s_add_u32 s30, s30, s33")
    k.e("s_waitcnt lgkmcnt(0)")
    srd(k, 24, 6, 0x1000000)
    k.e("s_cmp_ge_u32 s28, 4")
    k.e("s_cbranch_scc0 L_g1_compute")
    k.e("s_sub_u32 s28, s28, 4")
    k.e("s_lshr_b32 s34, s28, 1")
    k.e("s_cmp_eq_u32 s34, 0")
    k.e("s_cselect_b32 s16, s8, s10")
    k.e("s_cselect_b32 s17, s9, s11")
    k.e("s_lshl_b32 s35, s30, 7")
    k.e(f"s_mov_b32 s36, {F*2}")
    k.e(f"s_mov_b32 s18, {D*F*2}")
    k.e("s_cmp_lt_u32 s30, 27")
    k.e("s_cbranch_scc1 L_g1_ffn_w")
    k.e("s_mov_b32 s16, s4")
    k.e("s_mov_b32 s17, s5")
    k.e("s_sub_u32 s35, s30, 27")
    k.e("s_lshl_b32 s35, s35, 8")
    k.e("s_lshl_b32 s37, s34, 7")
    k.e("s_add_u32 s35, s35, s37")
    k.e(f"s_mov_b32 s36, {D*2}")
    k.e(f"s_mov_b32 s18, {D*D*2}")
    k.e("L_g1_ffn_w:")
    k.e("s_mov_b32 s19, 0x20000")
    k.e("v_lshrrev_b32 v2, 3, v1")
    k.e("v_and_b32 v3, 7, v1")
    k.e("v_lshrrev_b32 v4, 4, v1")
    k.e("v_and_b32 v5, 1, v4")
    k.e("v_lshlrev_b32 v5, 2, v5")
    k.e("v_xor_b32 v5, v5, v3")
    k.e("v_lshlrev_b32 v5, 4, v5")
    k.e("v_add_u32 v5, s35, v5")
    k.e("s_and_b32 s37, s28, 1")
    k.e("s_lshl_b32 s37, s37, 5")
    k.e("v_add_u32 v6, s37, v2")
    for i in range(4):
        k.e(f"v_add_u32 v7, {8*i}, v6")
        k.e(f"v_mad_u32_u24 v{16+i}, v7, s36, v5")
    k.e("s_lshl_b32 s37, s29, 8")
    k.e("s_lshl_b32 s38, s28, 6")
    k.e("s_add_u32 s37, s37, s38")
    k.e("v_add_u32 v6, s37, v2")
    k.e("s_movk_i32 s39, 1280")
    for i in range(8):
        k.e(f"v_add_u32 v7, {4*(i&1)}, v4")
        k.e("v_xor_b32 v7, v7, v3")
        k.e("v_lshlrev_b32 v7, 4, v7")
        k.e(f"v_add_u32 v20, {8*i}, v6")
        k.e(f"v_mad_u32_u24 v{8+i}, v20, s39, v7")
    k.e("s_lshl_b32 s40, s28, 13")
    k.e("s_lshl_b32 s41, s28, 12")
    k.e("s_add_u32 s41, s41, 32768")
    k.e("s_lshl_b32 s42, s36, 6")
    k.e(f"s_mov_b32 s43, {WS_XN}")
    k.e("s_mov_b32 s44, 0")
    def issue_stage(slot):
        for i in range(8):
            k.e(f"s_add_u32 m0, s40, {slot*G1_SLOT + i*1024}")
            k.e("s_nop 0")
            k.e(f"buffer_load_dwordx4 v{8+i}, s[24:27], s43 offen lds")
        for i in range(4):
            k.e(f"s_add_u32 m0, s41, {slot*G1_SLOT + i*1024}")
            k.e("s_nop 0")
            k.e(f"buffer_load_dwordx4 v{16+i}, s[16:19], s44 offen lds")
        k.e("s_add_u32 s43, s43, 128")
        k.e("s_add_u32 s44, s44, s42")
    for st in range(3):
        issue_stage(st)
    for st in range(10):
        n = 24 if st == 0 else (0 if st == 9 else 12)
        k.e(f"s_waitcnt vmcnt({n})")
        k.e("s_barrier")
        if st >= 1 and st + 2 <= 9:
            issue_stage((st + 2) % 3)
    k.e(f"s_branch {done}")
    k.e("L_g1_compute:")
    k.e("s_and_b32 s34, s28, 1")
    k.e("s_lshr_b32 s35, s28, 1")
    k.e("v_and_b32 v2, 15, v1")
    k.e("v_lshrrev_b32 v3, 5, v1")
    k.e("v_lshrrev_b32 v14, 2, v2")
    k.e("v_lshl_add_u32 v4, v3, 3, v14")
    k.e("v_lshlrev_b32 v4, 7, v4")
    k.e("v_bfe_u32 v15, v1, 4, 1")
    k.e("v_lshlrev_b32 v15, 1, v15")
    k.e("v_bfe_u32 v16, v1, 1, 1")
    k.e("v_add_u32 v15, v15, v16")
    k.e("s_lshl_b32 s36, s34, 2")
    k.e("v_add_u32 v15, s36, v15")
    k.e("v_bfe_u32 v16, v1, 3, 1")
    k.e("v_lshlrev_b32 v16, 2, v16")
    k.e("v_xor_b32 v15, v15, v16")
    k.e("v_lshl_add_u32 v4, v15, 4, v4")
    k.e("v_and_b32 v16, 1, v1")
    k.e("v_lshl_add_u32 v4, v16, 3, v4")
    k.e("v_add_u32 v4, 32768, v4")
    k.e("v_and_b32 v14, 31, v1")
    k.e("v_bfe_u32 v15, v1, 1, 3")
    k.e("v_xor_b32 v15, v15, v3")
    k.e("v_lshlrev_b32 v14, 7, v14")
    k.e("s_lshl_b32 s36, s35, 14")
    k.e("v_add_u32 v14, s36, v14")
    for ks in range(4):
        k.e(f"v_xor_b32 v16, {2*ks}, v15")
        k.e(f"v_lshl_add_u32 v{5+ks}, v16, 4, v14")
    for i in range(5):
        k.e(f"v_mov_b32 v{9+i}, v{4+i}")
    ACC = 128
    for i in range(128):
        k.e(f"v_mov_b32 v{ACC+i}, 0")
    SETS = [16, 40]
    def rd(st, ks):
        b = SETS[st]
        A = lambda a, r: f"ds_read_b64_tr_b16 v[{b+4*a+2*r}:{b+4*a+2*r+1}], v9 offset:{a*8192 + ks*2048 + r*512}"
        B = lambda j: f"ds_read_b128 v[{b+8+4*j}:{b+11+4*j}], v{10+ks} offset:{j*4096}"
        return [A(0,0), A(0,1), B(0), A(1,0), A(1,1), B(1), B(2), B(3)]
    def mm(st):
        b = SETS[st]
        out = []
        for j in range(4):
            for a in range(2):
                d = ACC + (a*4+j)*16
                out.append(f"v_mfma_f32_32x32x16_bf16 v[{d}:{d+15}], v[{b+4*a}:{b+4*a+3}], v[{b+8+4*j}:{b+11+4*j}], v[{d}:{d+15}]")
        return out
    def mix(m, r, first=0):
        out = []
        for i, x in enumerate(m):
            out.append(x)
            if first <= i < first+4:
                out += r[2*(i-first):2*(i-first)+2]
        return out
    k.e("s_mov_b32 s40, 0")
    k.e("s_mov_b32 s41, 9")
    k.e("s_barrier")
    lq = Q("lgkmcnt", 15)
    autowait(k, rd(0, 0), lq)
    head = list(lq.q)
    k.e(".p2align 6")
    k.e("L_g1_loop:")
    body = mix(mm(0), rd(1, 1)) + mix(mm(1), rd(0, 2)) + mix(mm(0), rd(1, 3))
    autowait(k, body, lq)
    m3 = mm(1)
    autowait(k, ["LGKM0", m3[0]], lq)
    k.e(f"s_add_u32 s40, s40, {G1_SLOT}")
    k.e(f"s_cmp_eq_u32 s40, {3*G1_SLOT}")
    k.e("s_cselect_b32 s40, 0, s40")
    for i in range(5):
        k.e(f"v_add_u32 v{9+i}, s40, v{4+i}")
    k.e(m3[1])
    k.e("s_cmp_eq_u32 s41, 0")
    k.e("s_cbranch_scc1 L_g1_tail")
    k.e("s_sub_u32 s41, s41, 1")
    k.e("s_barrier")
    r0 = rd(0, 0)
    autowait(k, r0[0:2] + mix(m3[2:], r0[2:]), lq)
    assert lq.q == head, (lq.q, head)
    k.e("s_branch L_g1_loop")
    k.e("L_g1_tail:")
    for x in m3[2:]:
        k.e(x)
    k.e("s_lshl_b32 s36, s29, 3")
    k.e("s_lshl_b32 s37, s35, 2")
    k.e("s_add_u32 s36, s36, s37")
    k.e("v_lshlrev_b32 v2, 4, v1")
    k.e("s_cmp_lt_u32 s30, 27")
    k.e("s_cbranch_scc0 L_g1_epq")
    k.e(f"s_mul_i32 s36, s36, {HO_BLK*1024}")
    k.e("s_lshl_b32 s37, s30, 12")
    k.e("s_lshl_b32 s38, s34, 11")
    k.e("s_add_u32 s36, s36, s37")
    k.e("s_add_u32 s36, s36, s38")
    k.e(f"s_add_u32 s36, s36, {WS_HO}")
    k.e("s_nop 7")
    for j in range(4):
        g, u = ACC + j*16, ACC + (4+j)*16
        p = 16 + 8*j
        for r in range(16):
            k.e(f"v_max_f32 v{g+r}, 0, v{g+r}")
        for r in range(16):
            k.e(f"v_mul_f32 v{g+r}, v{g+r}, v{u+r}")
        for r in range(8):
            k.e(f"v_cvt_pk_bf16_f32 v{p+r}, v{g+2*r}, v{g+2*r+1}")
        k.e(f"buffer_store_dwordx4 v[{p}:{p+3}], v2, s[24:27], s36 offen")
        k.e(f"buffer_store_dwordx4 v[{p+4}:{p+7}], v2, s[24:27], s36 offen offset:1024")
        k.e(f"s_add_u32 s36, s36, {HO_BLK*1024}")
    k.e(f"s_branch {done}")
    k.e("L_g1_epq:")
    k.e(f"s_mul_i32 s36, s36, {40*1024}")
    k.e("s_sub_u32 s37, s30, 27")
    k.e("s_lshl_b32 s37, s37, 13")
    k.e("s_lshl_b32 s38, s34, 11")
    k.e("s_add_u32 s36, s36, s37")
    k.e("s_add_u32 s36, s36, s38")
    k.e(f"s_add_u32 s36, s36, {WS_Q}")
    k.e("s_add_u32 s37, s36, 4096")
    k.e(f"s_mov_b32 s38, {hex(QSCALE)}")
    k.e("s_nop 7")
    for j in range(4):
        for a in range(2):
            g = ACC + (a*4+j)*16
            p = 16 + 8*((2*j+a) % 8)
            for r in range(16):
                k.e(f"v_mul_f32 v{g+r}, s38, v{g+r}")
            for r in range(8):
                k.e(f"v_cvt_pk_bf16_f32 v{p+r}, v{g+2*r}, v{g+2*r+1}")
            so = "s37" if a else "s36"
            k.e(f"buffer_store_dwordx4 v[{p}:{p+3}], v2, s[24:27], {so} offen")
            k.e(f"buffer_store_dwordx4 v[{p+4}:{p+7}], v2, s[24:27], {so} offen offset:1024")
        k.e(f"s_add_u32 s36, s36, {40*1024}")
        k.e(f"s_add_u32 s37, s37, {40*1024}")
    k.e(f"{done}:")
    return finish(k, 256), ("g1_kernel", G1_WGS, 512, G1_LDS)
```

```python
from dsl import *
G2_WGS = 256
R = 8
G2_LDS = R*5120*4
NSTEP = 37

def gen_g2():
    k = K("g2_kernel")
    done = "L_g2_done"
    k.e(f"s_cmp_ge_u32 s2, {G2_WGS}")
    k.e(f"s_cbranch_scc1 {done}")
    k.e(f"s_load_dwordx2 s[4:5], s[0:1], {A_X}")
    k.e(f"s_load_dwordx2 s[8:9], s[0:1], {A_WO}")
    k.e(f"s_load_dwordx4 s[44:47], s[0:1], {A_WD}")
    k.e(f"s_load_dwordx2 s[6:7], s[0:1], {A_WS}")
    k.e("v_lshrrev_b32 v3, 6, v0")
    k.e("v_and_b32 v1, 63, v0")
    k.e("v_readfirstlane_b32 s28, v3")
    k.e("s_and_b32 s31, s2, 7")
    k.e("s_lshr_b32 s32, s2, 3")
    k.e("s_lshl_b32 s29, s31, 3")
    k.e("s_lshr_b32 s33, s32, 2")
    k.e("s_add_u32 s29, s29, s33")
    k.e("s_and_b32 s30, s32, 3")
    k.e("s_mul_i32 s33, s30, 320")
    k.e("v_lshlrev_b32 v2, 4, v1")
    k.e("s_movk_i32 s34, 1280")
    for q in range(5):
        k.e(f"v_add_u32 v3, {64*q}, v1")
        k.e("v_mul_u32_u24 v4, 3277, v3")
        k.e("v_lshrrev_b32 v4, 16, v4")
        k.e("v_mul_u32_u24 v5, 20, v4")
        k.e("v_sub_u32 v5, v3, v5")
        k.e("v_lshlrev_b32 v5, 4, v5")
        k.e("v_add_u32 v5, s33, v5")
        k.e(f"v_mad_u32_u24 v{8+q}, v4, s34, v5")
    k.e("v_lshrrev_b32 v3, 5, v1")
    k.e("v_bfe_u32 v4, v1, 2, 2")
    k.e("v_lshl_add_u32 v3, v3, 2, v4")
    k.e("v_mul_u32_u24 v13, 320, v3")
    k.e("v_bfe_u32 v4, v1, 4, 1")
    k.e("v_lshl_add_u32 v13, v4, 5, v13")
    k.e("v_and_b32 v4, 3, v1")
    k.e("v_lshl_add_u32 v13, v4, 3, v13")
    k.e(f"s_mul_i32 s35, s28, {R*5120}")
    k.e("v_add_u32 v13, s35, v13")
    for j in range(5):
        k.e(f"v_add_u32 v3, {256*j}, v0")
        k.e("v_mul_u32_u24 v4, 1639, v3")
        k.e("v_lshrrev_b32 v4, 16, v4")
        k.e("v_mul_u32_u24 v5, 40, v4")
        k.e("v_sub_u32 v5, v3, v5")
        k.e("v_lshlrev_b32 v6, 3, v5")
        k.e("v_add_u32 v6, s33, v6")
        k.e(f"v_mad_u32_u24 v{14+j}, v4, s34, v6")
        k.e("v_mul_u32_u24 v4, 656, v4")
        k.e(f"v_lshl_add_u32 v{19+j}, v5, 4, v4")
    k.e(f"s_mul_i32 s36, s29, {32*1280}")
    k.e(f"s_mul_i32 s37, s29, {HO_BLK*1024}")
    k.e(f"s_add_u32 s37, s37, {WS_HO}")
    k.e("s_lshl_b32 s38, s28, 10")
    k.e("s_add_u32 s37, s37, s38")
    k.e("s_mul_i32 s38, s28, 20480")
    k.e("s_mov_b32 s39, s38")
    k.e("s_waitcnt lgkmcnt(0)")
    srd(k, 12, 4, S*D*2)
    srd(k, 16, 44, F*D*2)
    srd(k, 20, 8, D*D*2)
    srd(k, 24, 6, 0x1000000)
    srd(k, 40, 46, S*D*2)
    XB, BB, AB, ACC = 24, 36, 68, 112
    vq = Q("vmcnt", 63); lq = Q("lgkmcnt", 15)
    for j in range(5):
        k.e(f"buffer_load_dwordx2 v[{XB+2*j}:{XB+2*j+1}], v{14+j}, s[12:15], s36 offen")
        vq.issue("x")
    def loads(i):
        sl = i % R
        out = [f"buffer_load_dwordx4 v[{BB+4*sl}:{BB+4*sl+3}], v2, s[24:27], s37 offen", "s_add_u32 s37, s37, 4096"]
        sr, so = ("s[16:19]", "s38") if i < 27 else ("s[20:23]", "s39")
        for q in range(5):
            out += [f"s_add_u32 m0, s35, {sl*5120 + q*1024}", "s_nop 0",
                    f"buffer_load_dwordx4 v{8+q}, {sr}, {so} offen lds"]
        out += [f"s_add_u32 {so}, {so}, 81920"]
        return out
    def emit_loads(i):
        for ins in loads(i):
            k.e(ins)
            if ins.startswith("buffer"): vq.issue(("st", i))
    def reads(i):
        sl = i % R; b = AB + 20*(i % 2)
        return [f"ds_read_b64_tr_b16 v[{b+4*a+2*r}:{b+4*a+2*r+1}], v13 offset:{sl*5120 + r*2560 + a*64}"
                for a in range(5) for r in range(2)]
    def mm(i):
        sl = i % R; b = AB + 20*(i % 2)
        return [f"v_mfma_f32_32x32x16_bf16 v[{ACC+16*a}:{ACC+16*a+15}], v[{b+4*a}:{b+4*a+3}], v[{BB+4*sl}:{BB+4*sl+3}], " +
                ("0" if i == 0 else f"v[{ACC+16*a}:{ACC+16*a+15}]") for a in range(5)]
    for i in range(R-1):
        emit_loads(i)
    k.e(vq.need(lambda it: it == ("st", 0)))
    autowait(k, reads(0), lq)
    for i in range(NSTEP):
        if i >= 1 and i + R - 1 < NSTEP + 0 and True:
            pass
        if i + 1 < NSTEP:
            w = vq.need(lambda it: it == ("st", i+1))
            if w: k.e(w)
            rd = reads(i+1)
        else:
            rd = []
        m = mm(i)
        st = []
        for a in range(5):
            st.append(m[a]); st += rd[2*a:2*a+2]
        autowait(k, st, lq)
        if i + R - 1 < NSTEP:
            emit_loads(i + R - 1)
    k.e("s_waitcnt lgkmcnt(0)")
    k.e("s_barrier")
    k.e("v_and_b32 v3, 31, v1")
    k.e("v_mul_u32_u24 v3, 656, v3")
    k.e("v_lshrrev_b32 v4, 5, v1")
    k.e("v_lshl_add_u32 v3, v4, 4, v3")
    k.e("s_mul_i32 s35, s28, 20992")
    k.e("v_add_u32 v3, s35, v3")
    k.e("s_nop 7")
    for a in range(5):
        for g in range(4):
            k.e(f"ds_write_b128 v3, v[{ACC+16*a+4*g}:{ACC+16*a+4*g+3}] offset:{a*128 + g*32}")
    k.e("s_waitcnt lgkmcnt(0)")
    k.e("s_barrier")
    P = 36
    for j in range(5):
        for w in range(4):
            b = P + 16*j + 4*w
            k.e(f"ds_read_b128 v[{b}:{b+3}], v{19+j} offset:{w*20992}")
    k.e("s_waitcnt vmcnt(0) lgkmcnt(0)")
    for j in range(5):
        b = P + 16*j
        x0, x1 = XB+2*j, XB+2*j+1
        for r in range(4):
            k.e(f"v_add_f32 v{b+r}, v{b+r}, v{b+4+r}")
            k.e(f"v_add_f32 v{b+8+r}, v{b+8+r}, v{b+12+r}")
        k.e(f"v_lshlrev_b32 v{b+4}, 16, v{x0}")
        k.e(f"v_and_b32 v{b+5}, 0xffff0000, v{x0}")
        k.e(f"v_lshlrev_b32 v{b+6}, 16, v{x1}")
        k.e(f"v_and_b32 v{b+7}, 0xffff0000, v{x1}")
        for r in range(4):
            k.e(f"v_add_f32 v{b+r}, v{b+r}, v{b+8+r}")
        for r in range(4):
            k.e(f"v_add_f32 v{b+r}, v{b+r}, v{b+4+r}")
        k.e(f"v_cvt_pk_bf16_f32 v{b+8}, v{b}, v{b+1}")
        k.e(f"v_cvt_pk_bf16_f32 v{b+9}, v{b+2}, v{b+3}")
        k.e(f"buffer_store_dwordx2 v[{b+8}:{b+9}], v{14+j}, s[40:43], s36 offen")
    k.e(f"{done}:")
    return finish(k, 192), ("g2_kernel", G2_WGS, 256, G2_LDS)
```

```python
from dsl import *

LN_WGS = 128
LN_LDS = 53248 + 16*1296

def dpp_reduce16(k, reg, tmp, op):
    for r in (8, 4, 2, 1):
        k.e("s_nop 1")
        k.e(f"{op}_dpp v{reg}, v{reg}, v{reg} row_ror:{r} row_mask:0xf bank_mask:0xf")

def gen_ln():
    k = K("ln_kernel")
    done = "L_ln_done"
    k.e(f"s_cmp_ge_u32 s2, {LN_WGS}")
    k.e(f"s_cbranch_scc1 {done}")
    k.e(f"s_load_dwordx2 s[4:5], s[0:1], {A_X}")
    k.e(f"s_load_dwordx4 s[8:11], s[0:1], {A_WK}")
    k.e(f"s_load_dwordx2 s[6:7], s[0:1], {A_WS}")
    k.e("v_lshrrev_b32 v3, 6, v0")
    k.e("v_and_b32 v1, 63, v0")
    k.e("v_readfirstlane_b32 s28, v3")
    k.e("v_lshlrev_b32 v2, 4, v1")
    k.e("v_lshrrev_b32 v3, 4, v0")
    k.e("v_and_b32 v4, 15, v0")
    k.e("v_mul_u32_u24 v5, 1280, v3")
    k.e("v_lshl_add_u32 v5, v4, 4, v5")
    k.e("v_mul_u32_u24 v6, 1296, v3")
    k.e("v_lshl_add_u32 v6, v4, 4, v6")
    k.e("v_add_u32 v6, 53248, v6")
    k.e("s_mul_i32 s29, s2, 20480")
    k.e("s_waitcnt lgkmcnt(0)")
    srd(k, 12, 4, S*D*2)
    k.e("s_cmp_lt_u32 s28, 2")
    k.e("s_cselect_b32 s16, s8, s10")
    k.e("s_cselect_b32 s17, s9, s11")
    k.e("s_mov_b32 s18, 25600")
    k.e("s_mov_b32 s19, 0x20000")
    k.e("s_cselect_b32 s30, 0, 26624")
    srd(k, 24, 6, 0x600000)
    for j in range(5):
        k.e(f"buffer_load_dwordx4 v[{8+4*j}:{11+4*j}], v5, s[12:15], s29 offen offset:{256*j}")
    k.e("s_and_b32 s31, s28, 1")
    k.e("s_lshl_b32 s31, s31, 10")
    k.e("s_add_u32 s32, s30, s31")
    for t in range(13):
        k.e("s_mov_b32 m0, s32")
        k.e("s_add_u32 s32, s32, 2048")
        k.e(f"buffer_load_dwordx4 v2, s[16:19], s31 offen lds")
        k.e("s_add_u32 s31, s31, 2048")
    k.e("v_and_b32 v3, 15, v1")
    k.e("v_lshrrev_b32 v4, 4, v1")
    k.e("v_mul_u32_u24 v72, 1296, v3")
    k.e("v_lshl_add_u32 v72, v4, 4, v72")
    k.e("v_add_u32 v72, 53248, v72")
    k.e("v_lshrrev_b32 v73, 2, v3")
    k.e("v_lshl_add_u32 v73, v4, 3, v73")
    k.e("v_mul_u32_u24 v73, 40, v73")
    k.e("v_and_b32 v74, 3, v1")
    k.e("v_lshl_add_u32 v73, v74, 3, v73")
    k.e("s_and_b32 s33, s28, 1")
    k.e("s_lshl_b32 s34, s33, 5")
    k.e("s_add_u32 s34, s34, s30")
    k.e("v_add_u32 v73, s34, v73")
    k.e("s_waitcnt vmcnt(13)")
    for i in range(20):
        k.e(f"v_lshlrev_b32 v{32+2*i}, 16, v{8+i}")
        k.e(f"v_and_b32 v{33+2*i}, 0xffff0000, v{8+i}")
    for a in range(4):
        k.e(f"v_add_f32 v{8+a}, v{32+a}, v{36+a}")
    for i in range(8, 40):
        k.e(f"v_add_f32 v{8+i%4}, v{8+i%4}, v{32+i}")
    k.e("v_add_f32 v8, v8, v9")
    k.e("v_add_f32 v10, v10, v11")
    k.e("v_add_f32 v8, v8, v10")
    dpp_reduce16(k, 8, 9, "v_add_f32")
    k.e("v_mul_f32 v8, 0x3acccccd, v8")
    for i in range(40):
        k.e(f"v_sub_f32 v{32+i}, v{32+i}, v8")
    for a in range(4):
        k.e(f"v_mul_f32 v{12+a}, v{32+a}, v{32+a}")
    for i in range(4, 40):
        k.e(f"v_fmac_f32 v{12+i%4}, v{32+i}, v{32+i}")
    k.e("v_add_f32 v12, v12, v13")
    k.e("v_add_f32 v14, v14, v15")
    k.e("v_add_f32 v12, v12, v14")
    dpp_reduce16(k, 12, 13, "v_add_f32")
    k.e("v_mov_b32 v13, 0x3727c5ac")
    k.e("v_fmac_f32 v13, 0x3acccccd, v12")
    k.e("v_rsq_f32 v13, v13")
    k.e("s_nop 0")
    for i in range(40):
        k.e(f"v_mul_f32 v{32+i}, v{32+i}, v13")
    for i in range(20):
        k.e(f"v_cvt_pk_bf16_f32 v{76+i}, v{32+2*i}, v{33+2*i}")
    for j in range(5):
        k.e(f"ds_write_b128 v6, v[{76+4*j}:{79+4*j}] offset:{256*j}")
    for j in range(5):
        k.e(f"buffer_store_dwordx4 v[{76+4*j}:{79+4*j}], v5, s[24:27], s29 offen offset:{256*j}")
    k.e("s_waitcnt vmcnt(5) lgkmcnt(0)")
    k.e("s_barrier")
    def reads(set_base, s0):
        for i in range(5):
            st = s0 + i
            b = set_base + 8*i
            k.e(f"ds_read_b128 v[{b}:{b+3}], v72 offset:{64*st}")
            k.e(f"ds_read_b64_tr_b16 v[{b+4}:{b+5}], v73 offset:{1280*st}")
            k.e(f"ds_read_b64_tr_b16 v[{b+6}:{b+7}], v73 offset:{1280*st+160}")
    def mf(set_base, swap, first):
        for i in range(5):
            b = set_base + 8*i
            x, w = f"v[{b}:{b+3}]", f"v[{b+4}:{b+7}]"
            a_, b_ = (x, w) if swap else (w, x)
            c = "0" if (first and i == 0) else "v[48:51]"
            k.e(f"v_mfma_f32_16x16x32_bf16 v[48:51], {a_}, {b_}, {c}")
    def job(swap):
        sets = [8, 96]
        reads(sets[0], 0)
        for b in range(4):
            if b < 3:
                reads(sets[(b+1) % 2], 5*(b+1))
                k.e("s_waitcnt lgkmcnt(15)")
            else:
                k.e("s_waitcnt lgkmcnt(0)")
            mf(sets[b % 2], swap, b == 0)
        k.e("s_nop 7")
    k.e("s_lshr_b32 s35, s2, 1")
    k.e(f"s_mul_i32 s35, s35, {KV_STRIDE}")
    k.e(f"s_add_u32 s35, s35, {WS_KV}")
    k.e("s_and_b32 s36, s2, 1")
    k.e("s_cmp_lt_u32 s28, 2")
    k.e("s_cbranch_scc0 L_ln_v")
    job(False)
    k.e("v_mul_f32 v52, v48, v48")
    k.e("v_fmac_f32 v52, v49, v49")
    k.e("v_fmac_f32 v52, v50, v50")
    k.e("v_fmac_f32 v52, v51, v51")
    k.e("v_cvt_pk_bf16_f32 v54, v48, v49")
    k.e("v_cvt_pk_bf16_f32 v55, v50, v51")
    k.e("s_lshl_b32 s37, s36, 4")
    k.e("v_add_u32 v56, s37, v3")
    k.e("s_cmp_eq_u32 s28, 0")
    k.e("s_cbranch_scc0 L_ln_k1")
    k.e("v_and_b32 v57, 1, v4")
    k.e("v_lshl_add_u32 v57, v57, 5, v56")
    k.e("v_lshlrev_b32 v57, 4, v57")
    k.e("v_lshrrev_b32 v58, 1, v4")
    k.e("v_lshl_add_u32 v57, v58, 3, v57")
    k.e("buffer_store_dwordx2 v[54:55], v57, s[24:27], s35 offen")
    k.e("s_branch L_ln_kn")
    k.e("L_ln_k1:")
    k.e("v_cmp_eq_u32 vcc, 0, v4")
    k.e("v_mov_b32 v58, 0x3f803f80")
    k.e("v_mov_b32 v59, 0x00003f80")
    k.e("v_cndmask_b32 v52, 0, v52, vcc")
    k.e("v_cndmask_b32 v54, v58, v54, vcc")
    k.e("v_cndmask_b32 v55, v59, v55, vcc")
    k.e("v_lshlrev_b32 v57, 8, v4")
    k.e("v_lshl_add_u32 v57, v56, 3, v57")
    k.e("s_mov_b64 exec, 0xffffffff")
    k.e("buffer_store_dwordx2 v[54:55], v57, s[24:27], s35 offen offset:3072")
    k.e("s_mov_b64 exec, -1")
    k.e("L_ln_kn:")
    k.e("v_mov_b32 v53, v52")
    k.e("s_nop 1")
    k.e("v_permlane16_swap_b32 v52, v53")
    k.e("s_nop 1")
    k.e("v_add_f32 v52, v52, v53")
    k.e("v_mov_b32 v53, v52")
    k.e("s_nop 1")
    k.e("v_permlane32_swap_b32 v52, v53")
    k.e("s_nop 1")
    k.e("v_add_f32 v52, v52, v53")
    dpp_reduce16(k, 52, 53, "v_max_f32")
    k.e("s_lshl_b32 s37, s2, 1")
    k.e("s_add_u32 s37, s37, s28")
    k.e("s_lshl_b32 s37, s37, 2")
    k.e(f"s_add_u32 s37, s37, {WS_KN}")
    k.e("v_mov_b32 v53, 0")
    k.e("s_mov_b64 exec, 1")
    k.e("buffer_store_dword v52, v53, s[24:27], s37 offen")
    k.e(f"s_branch {done}")
    k.e("L_ln_v:")
    job(True)
    k.e("v_cvt_pk_bf16_f32 v54, v48, v49")
    k.e("v_cvt_pk_bf16_f32 v55, v50, v51")
    k.e("s_lshl_b32 s37, s33, 4")
    k.e("v_add_u32 v56, s37, v3")
    k.e("v_and_b32 v58, 27, v56")
    k.e("v_cmp_eq_u32 vcc, 24, v58")
    k.e("v_mov_b32 v59, 0x3f803f80")
    k.e("s_nop 0")
    k.e("v_cndmask_b32 v58, 0, v59, vcc")
    k.e("v_cmp_gt_u32 vcc, 20, v56")
    k.e("v_lshrrev_b32 v57, 1, v4")
    k.e("v_lshl_add_u32 v57, v57, 5, v56")
    k.e("v_cndmask_b32 v54, v58, v54, vcc")
    k.e("v_cndmask_b32 v55, v58, v55, vcc")
    k.e("v_lshlrev_b32 v57, 4, v57")
    k.e("v_and_b32 v59, 1, v4")
    k.e("v_lshl_add_u32 v57, v59, 3, v57")
    k.e("s_lshl_b32 s37, s36, 10")
    k.e("s_add_u32 s35, s35, s37")
    k.e("buffer_store_dwordx2 v[54:55], v57, s[24:27], s35 offen offset:1024")
    k.e(f"{done}:")
    return finish(k, 136), ("ln_kernel", LN_WGS, 256, LN_LDS)
```

```python
import sys
from dsl import *
from k_ln import gen_ln
from k_g1 import gen_g1
from k_att import gen_att
from k_g2 import gen_g2
NAME = "parallel_sum__grouped_kv_mqa__glu_gated_reglu__prompt"
def build(parts, path):
    ref = open(f"cdna_kernels/{NAME}.s.ref").read().split("\n")
    hdr = [l for l in ref if l.startswith(";") and "@launch" not in l and "Override" not in l and "grid=ceil" not in l]
    out = "\n".join(hdr) + "\n"
    for _, (n, g, b, l) in parts:
        out += f"; @launch kernel={n} grid=({g},1,1) block=({b},1,1) lds={l}\n"
    out += '.amdgcn_target "amdgcn-amd-amdhsa--gfx950"\n'
    seen = set()
    for t, (n, *_) in parts:
        if n not in seen:
            out += t; seen.add(n)
    open(path, "w").write(out)
if __name__ == "__main__":
    path = sys.argv[1] if len(sys.argv) > 1 else f"cdna_kernels/{NAME}.s"
    build([gen_ln(), gen_g1(), gen_att(), gen_g2()], path)
```

```python
from gen import *
ln, g1, att, g2 = gen_ln(), gen_g1(), gen_att(), gen_g2()
ke = K("empty_kernel"); ke.e("s_nop 0")
em = (finish(ke, 8), ("empty_kernel", 256, 64, 0))
import os
os.makedirs("var", exist_ok=True)
build([ln, g1, att, g2, em], "v_empty1.s")
build([ln, g1, att, g2, em, em, em, em], "v_empty4.s")
build([ln, ln, g1, att, g2], "v_ln2.s")
build([ln, g1, g1, att, g2], "v_g12.s")
build([ln, g1, att, att, g2], "v_att2.s")
build([ln, g1, att, g2, g2], "v_g22.s")
```
